```python
import torch

def _softmax(x, axis=-1):
    return torch.softmax(x, dim=axis)
def _gelu(x):
    return torch.nn.functional.gelu(x, approximate="tanh")
def _silu(x):
    return torch.nn.functional.silu(x)
def _sigmoid(x):
    return torch.sigmoid(x)
def _layernorm(x, axis=-1, eps=1e-5):
    m = x.mean(dim=axis, keepdim=True)
    v = x.var(dim=axis, keepdim=True, unbiased=False)
    return (x - m) / torch.sqrt(v + eps)
def _scatter_add(tgt, idx, src, axis=0):
    return tgt.clone().index_add_(axis, idx, src)
def _segment_sum(src, seg, n):
    out = torch.zeros((n,) + src.shape[1:], dtype=src.dtype)
    return out.index_add_(0, seg, src)
def _pad(x, pw):
    flat = tuple(v for pair in reversed(pw) for v in pair)
    return torch.nn.functional.pad(x, flat)

kernel_name = 'gated_mix__compressed_kv_cla__geglu_ffn__prompt'

def setup_inputs():

    _w = (lambda a: (lambda t: t.to(torch.bfloat16) if t.is_floating_point() else t)(torch.as_tensor(a)))
    def _A_setup():
        B, H, Sq, Sk, D, M = 1, 32, 2048, 2048, 128, 640
        Dc = 4 * D
        return {
            "x": _w((lambda *s: torch.randn(*s, dtype=torch.bfloat16) * 0.05)(B, Sq, M)),
            "c_kv": _w((lambda *s: torch.randn(*s, dtype=torch.bfloat16) * 0.4)(B, Sk, Dc)),
            "w_q": _w((lambda *s: torch.randn(*s, dtype=torch.bfloat16) * 6.4)(M, H, D) * (M ** -0.5)),
            "w_uk": _w((lambda *s: torch.randn(*s, dtype=torch.bfloat16) * 6.4)(Dc, H, D) * (Dc ** -0.5)),
            "w_uv": _w((lambda *s: torch.randn(*s, dtype=torch.bfloat16) * 0.4)(Dc, H, D) * (Dc ** -0.5)),
            "w_o": _w((lambda *s: torch.randn(*s, dtype=torch.bfloat16) * 0.4)(H, D, M) * ((H * D) ** -0.5)),
        }
    _A_in = _A_setup()

    def _B_setup():
        B, S, D, F = 1, 2048, 640, 1728
        return {
            "x": _w((lambda *s: torch.randn(*s, dtype=torch.bfloat16) * 0.05)(B, S, D)),
            "w_gate": _w((lambda *s: torch.randn(*s, dtype=torch.bfloat16) * 0.05)(D, F)),
            "w_up": _w((lambda *s: torch.randn(*s, dtype=torch.bfloat16) * 0.05)(D, F)),
            "w_down": _w((lambda *s: torch.randn(*s, dtype=torch.bfloat16) * 0.05)(F, D)),
        }
    _B_in = _B_setup()

    return {
        "A_x": _A_in["x"],
        "A_c_kv": _A_in["c_kv"],
        "A_w_q": _A_in["w_q"],
        "A_w_uk": _A_in["w_uk"],
        "A_w_uv": _A_in["w_uv"],
        "A_w_o": _A_in["w_o"],
        "B_x": _B_in["x"],
        "B_w_gate": _B_in["w_gate"],
        "B_w_up": _B_in["w_up"],
        "B_w_down": _B_in["w_down"],
        "gate_w": _w((lambda *s: torch.randn(*s, dtype=torch.bfloat16) * 0.05)(640) * 16.0),
    }

def reference(A_x, A_c_kv, A_w_q, A_w_uk, A_w_uv, A_w_o, B_x, B_w_gate, B_w_up, B_w_down, gate_w):
    def _A_ref(x, c_kv, w_q, w_uk, w_uv, w_o):
        B, Sq, M = x.shape[0], x.shape[1], x.shape[2]
        Sk = c_kv.shape[1]
        H, D = w_q.shape[1], w_q.shape[2]
        q = torch.einsum("bqm,mhd->bhqd", x, w_q)
        k = torch.einsum("bkc,chd->bhkd", c_kv, w_uk)
        v = torch.einsum("bkc,chd->bhkd", c_kv, w_uv)
        scores = torch.einsum("bhqd,bhkd->bhqk", q, k) * (D ** -0.5)
        off = Sk - Sq
        qi = torch.arange(Sq)[:, None]
        kj = torch.arange(Sk)[None, :]
        cmask = kj <= (qi + off)
        scores = torch.where(cmask[None, None], scores, -1e9)
        p = _softmax(scores, axis=-1)
        ctx = torch.einsum("bhqk,bhkd->bhqd", p, v)
        return torch.einsum("bhqd,hdm->bqm", ctx, w_o)

    def _B_ref(x, w_gate, w_up, w_down):
        return (_gelu(x @ w_gate) * (x @ w_up)) @ w_down

    x = A_x
    g = _sigmoid((x * gate_w).sum(-1, keepdims=True))
    a = _A_ref(x, A_c_kv, A_w_q, A_w_uk, A_w_uv, A_w_o)
    b = _B_ref(x, B_w_gate, B_w_up, B_w_down)
    return g * a + (1 - g) * b
```

```python
import re

def regs_of(tok):
    tok = tok.strip()
    neg = tok.startswith('-')
    if neg: tok = tok[1:]
    m = re.fullmatch(r'abs\((.*)\)|\|(.*)\|', tok)
    if m: tok = m.group(1) or m.group(2)
    m = re.fullmatch(r'([vsa])(\d+)', tok)
    if m: return [(m.group(1), int(m.group(2)))]
    m = re.fullmatch(r'([vsa])\[(\d+):(\d+)\]', tok)
    if m: return [(m.group(1), i) for i in range(int(m.group(2)), int(m.group(3)) + 1)]
    if tok == 'vcc': return [('vcc', 0)]
    if tok in ('vcc_lo', 'vcc_hi'): return [('vcc', 0)]
    if tok == 'exec' or tok in ('exec_lo', 'exec_hi'): return [('exec', 0)]
    if tok == 'm0': return [('m0', 0)]
    if tok == 'scc': return [('scc', 0)]
    return []

TRANS = ('v_exp_f32', 'v_log_f32', 'v_rcp_f32', 'v_rsq_f32', 'v_sqrt_f32', 'v_sin_f32', 'v_cos_f32')

class Ins:
    __slots__ = ('text', 'op', 'ops', 'mods', 'rd', 'wr', 'kind', 'tag', 'label', 'line')
    def __init__(self, text, tag=None):
        self.text = text; self.tag = tag; self.label = None
        t = text.split(';')[0].strip()
        if t.endswith(':'):
            self.label = t[:-1]; self.op = 'label'; self.kind = 'label'; self.ops = []; self.mods = ''; self.rd = []; self.wr = []; return
        if t == '' or t.startswith('.'):
            self.op = 'dir'; self.kind = 'dir'; self.ops = []; self.mods = ''; self.rd = []; self.wr = []; return
        p = t.split(None, 1)
        op = p[0]; rest = p[1] if len(p) > 1 else ''
        op = re.sub(r'_(e32|e64|dpp|sdwa)$', '', op)
        self.op = op
        parts = [x.strip() for x in re.split(r',(?![^\[]*\])(?![^(]*\))', rest)] if rest else []
        mods = ''
        if parts and not op.startswith('s_waitcnt'):
            last = parts[-1].split(None, 1)
            parts[-1] = last[0]
            mods = last[1] if len(last) > 1 else ''
        self.ops = parts; self.mods = mods
        R = lambda i: regs_of(parts[i]) if i < len(parts) else []
        rd, wr = [], []
        if op.startswith('v_mfma'):
            kind = 'mfma'; wr = R(0); rd = R(1) + R(2) + R(3)
        elif op.startswith('ds_read') or op.startswith('ds_bpermute') or op.startswith('ds_swizzle'):
            kind = 'ds'; wr = R(0); rd = sum((R(i) for i in range(1, len(parts))), [])
        elif op.startswith('ds_write') or op.startswith('ds_add') or op.startswith('ds_or') or op.startswith('ds_max'):
            kind = 'ds'; rd = sum((R(i) for i in range(len(parts))), [])
        elif op.startswith('buffer_load') or op.startswith('global_load'):
            kind = 'vmem'
            if re.search(r'\blds\b', mods):
                rd = sum((R(i) for i in range(len(parts))), []) + [('m0', 0)]
            else:
                wr = R(0); rd = sum((R(i) for i in range(1, len(parts))), [])
        elif op.startswith('buffer_store') or op.startswith('global_store'):
            kind = 'vmem'; rd = sum((R(i) for i in range(len(parts))), [])
        elif op.startswith('buffer_atomic') or op.startswith('global_atomic'):
            kind = 'vmem'; rd = sum((R(i) for i in range(len(parts))), [])
            if re.search(r'\bsc0\b', mods): wr = R(0)
        elif op.startswith('buffer_inv') or op.startswith('buffer_wbl2'):
            kind = 'vmem'
        elif op.startswith('s_load') or op.startswith('s_memtime') or op.startswith('s_memrealtime') or op.startswith('s_atomic'):
            kind = 'smem'; wr = R(0); rd = sum((R(i) for i in range(1, len(parts))), [])
        elif op in ('s_waitcnt', 's_barrier', 's_nop', 's_setprio', 's_endpgm', 's_sleep', 's_branch') or op.startswith('s_cbranch'):
            kind = 'ctl'
            if op.startswith('s_cbranch_scc'): rd = [('scc', 0)]
            if op.startswith('s_cbranch_vcc'): rd = [('vcc', 0)]
            if op.startswith('s_cbranch_exec'): rd = [('exec', 0)]
        elif op.startswith('s_cmp') or op.startswith('s_bitcmp'):
            kind = 'salu'; rd = R(0) + R(1); wr = [('scc', 0)]
        elif op.startswith('s_'):
            kind = 'salu'; wr = R(0); rd = sum((R(i) for i in range(1, len(parts))), [])
            if 'saveexec' in op: wr = wr + [('exec', 0)]; rd = rd + [('exec', 0)]
            if op in ('s_cselect_b32', 's_cselect_b64', 's_addc_u32', 's_subb_u32'): rd = rd + [('scc', 0)]
            if op in ('s_addk_i32', 's_mulk_i32'): rd = rd + R(0)
            if op not in ('s_mov_b32', 's_mov_b64', 's_movk_i32', 's_cselect_b32', 's_cselect_b64', 's_mul_i32', 's_mul_hi_u32', 's_getpc_b64', 's_setpc_b64', 's_getreg_b32'):
                wr = wr + [('scc', 0)]
        elif op.startswith('v_'):
            kind = 'valu'
            if op.startswith('v_cmp'):
                wr = R(0); rd = R(1) + R(2)
                if op.startswith('v_cmpx'): wr = wr + [('exec', 0)]
            elif 'permlane' in op and 'swap' in op:
                wr = R(0) + R(1); rd = R(0) + R(1)
            elif op in ('v_add_co_u32', 'v_sub_co_u32', 'v_addc_co_u32', 'v_subb_co_u32'):
                wr = R(0) + R(1); rd = sum((R(i) for i in range(2, len(parts))), [])
            else:
                wr = R(0); rd = sum((R(i) for i in range(1, len(parts))), [])
                if op in ('v_fmac_f32', 'v_pk_fmac_f16', 'v_writelane_b32') or 'row_' in mods or 'quad_perm' in mods or 'dot2c' in op:
                    rd = rd + R(0)
        else:
            raise ValueError('unknown instruction: ' + text)
        self.kind = kind; self.rd = rd; self.wr = wr
    def is_dma(self): return self.kind == 'vmem' and re.search(r'\blds\b', self.mods) is not None
    def is_trans(self): return self.op in TRANS
    def is_dpp(self): return 'row_' in self.mods or 'quad_perm' in self.mods or 'wave_' in self.mods
    def passes(self):
        return 4 if '16x16x32' in self.op else 8
    def states(self):
        if self.op == 's_nop': return int(self.ops[0], 0) + 1
        if self.kind in ('label', 'dir'): return 0
        return 1

def hazard_need(prev, cur):
    need = 0
    pw = set(prev.wr); pr = set(prev.rd); cw = set(cur.wr); cr = set(cur.rd)
    pv = {r for r in pw if r[0] == 'v'}
    if prev.kind == 'mfma':
        big = 8 if prev.passes() == 4 else 12
        if cur.kind == 'mfma':
            C = set(regs_of(cur.ops[3])); AB = set(regs_of(cur.ops[1]) + regs_of(cur.ops[2]))
            if pv & AB: need = max(need, big)
            if pv & C and not (C == pv and prev.passes() == cur.passes()): need = max(need, big - 2)
            if pv & cw and not (cw == pv) : need = max(need, big - 2)
        elif cur.kind in ('valu', 'vmem', 'ds'):
            if pv & (cr | cw): need = max(need, big)
            if cur.kind == 'valu':
                C = set(regs_of(prev.ops[3]))
                if C & cw: need = max(need, 3 if prev.passes() == 4 else 7)
            if cur.kind in ('vmem', 'ds'):
                C = set(regs_of(prev.ops[3]))
                if C & cw: need = max(need, 3 if prev.passes() == 4 else 7)
    if prev.kind == 'valu':
        if cur.kind == 'mfma' and pv & cr: need = max(need, 2)
        if cur.kind == 'mfma' and ('exec', 0) in pw: need = max(need, 4)
        if prev.is_trans() and cur.kind == 'valu' and not cur.is_trans() and pv & cr: need = max(need, 1)
        if prev.is_trans() and cur.kind in ('vmem', 'ds') and pv & cr: need = max(need, 1)
        if cur.op in ('v_readfirstlane_b32', 'v_readlane_b32') and pv & cr: need = max(need, 1)
        if cur.kind == 'valu' and 'permlane' in cur.op and pv & cr: need = max(need, 2)
        if cur.kind == 'valu' and cur.is_dpp() and pv & cr: need = max(need, 2)
        ps = {r for r in pw if r[0] in ('s', 'vcc')}
        if ps & cr:
            if cur.kind == 'valu': need = max(need, 4 if cur.op in ('v_readlane_b32', 'v_writelane_b32') else 2)
            if cur.kind == 'vmem': need = max(need, 5)
            if cur.kind in ('salu', 'ctl', 'smem'): need = max(need, 1)
        if ('exec', 0) in pw and cur.kind == 'valu':
            if cur.is_dpp(): need = max(need, 5)
            if cur.op in ('v_readfirstlane_b32', 'v_readlane_b32') or 'permlane' in cur.op: need = max(need, 4)
    if prev.kind == 'salu' and ('m0', 0) in pw and ('m0', 0) in cr and cur.kind in ('vmem', 'ds'): need = max(need, 1)
    if prev.kind == 'vmem' and ('store' in prev.op or 'atomic' in prev.op) and ('x3' in prev.op or 'x4' in prev.op):
        data = set(regs_of(prev.ops[0]))
        if data & cw: need = max(need, 2)
    return need

class Emit:
    def __init__(self):
        self.out = []
        self.lpend = []
        self.vpend = []
        self.smem = False
        self.auto = True
    def raw(self, text):
        self.out.append(Ins(text))
    def _haz(self, ins):
        dist = 0; need = 0
        for p in reversed(self.out[-24:]):
            if p.kind == 'label': pass
            n = hazard_need(p, ins) - dist
            if n > need: need = n
            dist += p.states()
            if dist >= 20: break
        if need > 0:
            while need > 0:
                k = min(need, 16); self.out.append(Ins(f's_nop {k-1}')); need -= k
    def __call__(self, text, tag=None):
        ins = Ins(text, tag)
        if ins.kind in ('label', 'dir'):
            self.out.append(ins); return ins
        if self.auto:
            touch = set(ins.rd) | set(ins.wr)
            lw = None
            for i, d in enumerate(self.lpend):
                if d & touch: lw = len(self.lpend) - 1 - i
            vw = None
            for i, (t, d) in enumerate(self.vpend):
                if d & touch: vw = len(self.vpend) - 1 - i
            if lw is not None or vw is not None:
                self.wait(vm=vw, lgkm=lw)
        if ins.op == 's_waitcnt':
            m = re.search(r'vmcnt\((\d+)\)', text);
            if m: n = int(m.group(1)); self.vpend = self.vpend[len(self.vpend) - n:] if n < len(self.vpend) else self.vpend
            if m and int(m.group(1)) == 0: self.vpend = []
            m = re.search(r'lgkmcnt\((\d+)\)', text)
            if m:
                n = int(m.group(1))
                self.lpend = [] if n == 0 else self.lpend[-n:]
        self._haz(ins)
        self.out.append(ins)
        if ins.kind == 'ds': self.lpend.append(set(ins.wr))
        if ins.kind == 'vmem': self.vpend.append((tag, set(ins.wr)))
        return ins
    def wait(self, vm=None, lgkm=None):
        s = 's_waitcnt'
        if vm is not None:
            assert vm <= 63, vm
            s += f' vmcnt({vm})'
        if lgkm is not None:
            lgkm = min(lgkm, 15)
            s += f' lgkmcnt({lgkm})'
        a = self.auto; self.auto = False
        self(s)
        self.auto = a
    def vm_count_after(self, pred):
        idx = None
        for i, (t, d) in enumerate(self.vpend):
            if pred(t): idx = i
        return None if idx is None else len(self.vpend) - 1 - idx
    def wait_tag(self, pred, lgkm=None):
        n = self.vm_count_after(pred)
        if n is None and lgkm is None: return
        self.wait(vm=n, lgkm=lgkm)
    def text(self):
        o = []
        for i in self.out:
            o.append(i.text if i.kind in ('label', 'dir') and not i.text.startswith(' ') and i.kind == 'label' else '  ' + i.text)
        return '\n'.join(o) + '\n'
```

```python
import re, sys
import numpy as np
from asmlib import Ins, regs_of, hazard_need
M32 = 0xffffffff

class Wave:
    def __init__(self, prog, labels, wg, wave, bufsizes, ldsbytes, policy, maxsteps=3000000):
        self.p = prog; self.labels = labels; self.policy = policy
        self.s = {}; self.v = {}; self.scc = None; self.m0 = None; self.vcc = None
        self.exec = (1 << 64) - 1
        self.s[0] = 'KA'; self.s[1] = 'KA'; self.s[2] = wg
        self.v[0] = (np.arange(64) + 64 * wave).astype(np.uint64)
        self.wave = wave; self.wg = wg; self.bufsizes = bufsizes; self.lds = ldsbytes
        self.epoch = 0; self.errs = []; self.events = []
        self.lp = []; self.vp = []; self.sp = []
        self.hist = []; self.n = 0; self.maxsteps = maxsteps; self.cnt = {}
        self.gl = []
    def err(self, msg, ins):
        k = (msg.split(':')[0], ins.line)
        if k not in self.cnt:
            self.cnt[k] = 1; self.errs.append(f'wg{self.wg} w{self.wave} line {ins.line}: {msg} :: {ins.text.strip()}')
    def sval(self, t):
        t = t.strip()
        if t == 'm0': return self.m0
        if t in ('vcc', 'vcc_lo', 'vcc_hi'): return None
        if t == 'exec': return self.exec
        m = re.fullmatch(r's(\d+)', t)
        if m:
            x = self.s.get(int(m.group(1)), 'U')
            return x
        try: return int(t, 0) & M32
        except ValueError: pass
        try:
            return int(np.float32(float(t)).view(np.uint32))
        except ValueError: pass
        try: return int(eval(t, {}, {})) & M32
        except Exception: return None
    def val(self, t):
        t = t.strip()
        m = re.fullmatch(r'v(\d+)', t)
        if m: return self.v.get(int(m.group(1)))
        x = self.sval(t)
        if isinstance(x, int): return np.full(64, x, dtype=np.uint64)
        return None
    def setv(self, t, x):
        r = int(t[1:])
        if x is None: self.v[r] = None; return
        x = x & np.uint64(M32)
        if self.exec != (1 << 64) - 1:
            old = self.v.get(r)
            if old is None or self.exec is None: self.v[r] = None; return
            mask = np.array([(self.exec >> i) & 1 for i in range(64)], dtype=bool)
            x = np.where(mask, x, old)
        self.v[r] = x
    def lanes(self):
        if self.exec is None: return np.ones(64, bool)
        return np.array([(self.exec >> i) & 1 for i in range(64)], dtype=bool)
    def run(self):
        pc = 0; P = self.p
        while True:
            ins = P[pc]; pc += 1
            if ins.kind in ('label', 'dir'): continue
            self.n += 1
            if self.n > self.maxsteps: self.err('too many steps', ins); return
            dist = 0
            for q in reversed(self.hist[-22:]):
                nd = hazard_need(q, ins)
                if nd > dist: self.err(f'hazard: need {nd} have {dist} after [{q.text.strip()}] line {q.line}', ins)
                dist += q.states()
                if dist >= 20: break
            self.hist.append(ins)
            if len(self.hist) > 64: self.hist = self.hist[-32:]
            touch = set(ins.rd) | set(ins.wr)
            for e in self.lp:
                if e[0] & touch: self.err(f'lgkm: touches pending LDS result of line {e[2]}', ins)
            for e in self.vp:
                if e[0] & touch: self.err(f'vmcnt: touches pending VMEM result of line {e[2]}', ins)
            for e in self.sp:
                if e & touch: self.err('smem: touches pending SMEM result', ins)
            for r in ins.rd:
                if r[0] == 's' and self.s.get(r[1], 'U') == 'U': self.err(f'uninit: s{r[1]}', ins)
                if r[0] == 'v' and r[1] not in self.v and not ins.is_dpp(): self.err(f'uninit: v{r[1]}', ins)
            op = ins.op; o = ins.ops
            if ins.kind == 'ctl':
                if op == 's_endpgm':
                    for e in self.lp + self.vp:
                        if e[1] is not None: e[1][3] = self.epoch; e[1][5] = self.n
                    return
                if op == 's_barrier': self.epoch += 1
                elif op == 's_waitcnt':
                    m = re.search(r'vmcnt\((\d+)\)', ins.text)
                    if m:
                        n = int(m.group(1))
                        while len(self.vp) > n:
                            e = self.vp.pop(0)
                            if e[1] is not None: e[1][3] = self.epoch; e[1][5] = self.n
                    m = re.search(r'lgkmcnt\((\d+)\)', ins.text)
                    if m:
                        n = int(m.group(1))
                        if self.sp and n > 0: self.err('lgkm: counted wait with SMEM in flight', ins)
                        if n == 0: self.sp = []
                        while len(self.lp) > n:
                            e = self.lp.pop(0)
                            if e[1] is not None: e[1][3] = self.epoch; e[1][5] = self.n
                elif op == 's_branch': pc = self.labels[o[0]]
                elif op.startswith('s_cbranch'):
                    c = op[len('s_cbranch_'):]
                    if c in ('scc0', 'scc1'):
                        t = None if self.scc is None else (self.scc == (c == 'scc1'))
                    elif c in ('execz', 'execnz'):
                        t = None if self.exec is None else ((self.exec == 0) == (c == 'execz'))
                    else:
                        t = None if self.vcc is None else ((self.vcc == 0) == (c == 'vccz'))
                    if t is None:
                        pol = self.policy.get(o[0], False)
                        t = pol(self) if callable(pol) else pol
                    if t: pc = self.labels[o[0]]
                continue
            if ins.kind == 'smem':
                self.sp.append(set(ins.wr))
                if op.startswith('s_load') and self.s.get(int(re.match(r's\[(\d+)', o[1]).group(1))) == 'KA':
                    off = int(o[2], 0)
                    for i, r in enumerate(ins.wr):
                        slot = (off + 4 * i) // 8
                        self.s[r[1]] = 0 if (off + 4 * i) % 8 == 0 else ('P', slot)
                else:
                    for r in ins.wr: self.s[r[1]] = None
                continue
            if ins.kind == 'salu': self.salu(ins); continue
            if ins.kind == 'mfma':
                for r in ins.wr: self.v[r[1]] = None
                continue
            if ins.kind == 'valu': self.valu(ins); continue
            if ins.kind == 'ds': self.ds(ins); continue
            if ins.kind == 'vmem': self.vmem(ins); continue
    def salu(self, ins):
        op = ins.op; o = ins.ops
        def I(x): return isinstance(x, int)
        def W(x):
            if o[0] == 'm0': self.m0 = x
            elif o[0] == 'exec': self.exec = x
            elif o[0] in ('vcc', 'vcc_lo', 'vcc_hi'): self.vcc = None
            else: self.s[int(o[0][1:])] = x
        if op.endswith('b64') or op.endswith('u64'):
            def g64(t):
                if t == 'exec': return self.exec
                if t == 'vcc': return self.vcc
                m = re.fullmatch(r's\[(\d+):(\d+)\]', t)
                if m:
                    a, b = self.s.get(int(m.group(1))), self.s.get(int(m.group(2)))
                    return (a, b)
                x = int(t, 0); return x & ((1 << 64) - 1)
            def n64(x):
                if isinstance(x, tuple): return (x[0] | (x[1] << 32)) if I(x[0]) and I(x[1]) else None
                return x
            def w64(t, x):
                if t == 'exec': self.exec = n64(x)
                elif t == 'vcc': self.vcc = n64(x)
                else:
                    r = int(re.match(r's\[(\d+)', t).group(1))
                    if isinstance(x, tuple): self.s[r], self.s[r + 1] = x
                    elif x is None: self.s[r] = self.s[r + 1] = None
                    else: self.s[r] = x & M32; self.s[r + 1] = x >> 32
            if op == 's_mov_b64': w64(o[0], g64(o[1]))
            elif op == 's_cselect_b64':
                w64(o[0], None if self.scc is None else g64(o[1] if self.scc else o[2]))
            elif op == 's_and_saveexec_b64':
                old = self.exec; x = n64(g64(o[1])); w64(o[0], old)
                self.exec = None if (x is None or old is None) else old & x
                self.scc = None if self.exec is None else self.exec != 0
            elif op in ('s_or_b64', 's_and_b64', 's_xor_b64', 's_andn2_b64'):
                a, b = n64(g64(o[1])), n64(g64(o[2]))
                if a is None or b is None: r = None
                else: r = {'s_or_b64': a | b, 's_and_b64': a & b, 's_xor_b64': a ^ b, 's_andn2_b64': a & ~b & ((1 << 64) - 1)}[op]
                w64(o[0], r); self.scc = None if r is None else r != 0
            elif op in ('s_cmp_eq_u64', 's_cmp_lg_u64'):
                a, b = n64(g64(o[0])), n64(g64(o[1]))
                self.scc = None if a is None or b is None else ((a == b) == (op == 's_cmp_eq_u64'))
            else: raise ValueError(ins.text)
            return
        if op.startswith('s_cmp') or op.startswith('s_bitcmp'):
            a, b = self.sval(o[0]), self.sval(o[1])
            if not (I(a) and I(b)): self.scc = None; return
            if op.startswith('s_bitcmp'): self.scc = (((a >> b) & 1) == 1) == (op.startswith('s_bitcmp1')); return
            if op.endswith('i32'):
                a = a - (1 << 32) if a >> 31 else a; b = b - (1 << 32) if b >> 31 else b
            c = op.split('_')[2]
            self.scc = {'eq': a == b, 'lg': a != b, 'lt': a < b, 'le': a <= b, 'gt': a > b, 'ge': a >= b}[c]; return
        if op in ('s_mov_b32', 's_movk_i32'): W(self.sval(o[1])); return
        if op == 's_cselect_b32': W(None if self.scc is None else self.sval(o[1] if self.scc else o[2])); return
        if op == 's_getreg_b32': W(None); return
        a = self.sval(o[1]); b = self.sval(o[2]) if len(o) > 2 else None
        if op == 's_addc_u32':
            W(a if (isinstance(a, tuple)) else (None if not (I(a) and I(b) and self.scc is not None) else (a + b + self.scc) & M32)); self.scc = False; return
        if op == 's_and_b32' and isinstance(a, tuple): W(a); self.scc = True; return
        if not (I(a) and (b is None or I(b))) or (len(o) > 2 and not I(b)):
            W(None);
            if ('scc', 0) in ins.wr: self.scc = None
            return
        if op == 's_add_u32': r = a + b; self.scc = r > M32
        elif op == 's_add_i32': r = a + b; self.scc = None
        elif op == 's_sub_u32': r = a - b; self.scc = a < b
        elif op == 's_sub_i32': r = a - b; self.scc = None
        elif op == 's_mul_i32': r = a * b
        elif op == 's_mul_hi_u32': r = (a * b) >> 32
        elif op == 's_lshl_b32': r = (a << (b & 31)) & M32; self.scc = r != 0
        elif op == 's_lshr_b32': r = a >> (b & 31); self.scc = r != 0
        elif op == 's_and_b32': r = a & b; self.scc = r != 0
        elif op == 's_or_b32': r = a | b; self.scc = r != 0
        elif op == 's_xor_b32': r = a ^ b; self.scc = r != 0
        elif op == 's_min_u32': r = min(a, b); self.scc = a < b
        elif op == 's_max_u32': r = max(a, b); self.scc = a > b
        elif op == 's_bfe_u32': r = (a >> (b & 31)) & ((1 << ((b >> 16) & 0x7f)) - 1); self.scc = r != 0
        elif op == 's_lshl1_add_u32': r = (a << 1) + b; self.scc = None
        elif op == 's_lshl2_add_u32': r = (a << 2) + b; self.scc = None
        elif op == 's_lshl3_add_u32': r = (a << 3) + b; self.scc = None
        elif op == 's_lshl4_add_u32': r = (a << 4) + b; self.scc = None
        else: raise ValueError(ins.text)
        W(r & M32)
    def valu(self, ins):
        op = ins.op; o = ins.ops; U = np.uint64
        if op == 'v_readfirstlane_b32':
            x = self.val(o[1]); self.s[int(o[0][1:])] = None if x is None else int(x[np.argmax(self.lanes())]); return
        if op == 'v_readlane_b32':
            self.s[int(o[0][1:])] = None; return
        if op.startswith('v_cmp'):
            a, b = self.val(o[1]), self.val(o[2]); r = None
            if a is not None and b is not None and op.endswith(('u32', 'i32')) and self.exec is not None:
                if op.endswith('i32'): a = a.astype(np.uint32).view(np.int32); b = b.astype(np.uint32).view(np.int32)
                c = op.split('_')[2]
                m = {'eq': a == b, 'ne': a != b, 'lt': a < b, 'le': a <= b, 'gt': a > b, 'ge': a >= b}[c] & self.lanes()
                r = sum(1 << i for i in range(64) if m[i])
            if o[0] == 'vcc': self.vcc = r
            else:
                k = int(re.match(r's\[(\d+)', o[0]).group(1))
                self.s[k] = None if r is None else r & M32; self.s[k + 1] = None if r is None else r >> 32
            return
        f = None
        if not ins.is_dpp() and re.fullmatch(r'v\d+', o[0]):
            a = [self.val(x) for x in o[1:]]
            if all(x is not None for x in a):
                f = {'v_mov_b32': lambda: a[0], 'v_add_u32': lambda: a[0] + a[1], 'v_sub_u32': lambda: a[0] + U(1 << 32) - a[1],
                     'v_subrev_u32': lambda: a[1] + U(1 << 32) - a[0],
                     'v_and_b32': lambda: a[0] & a[1], 'v_or_b32': lambda: a[0] | a[1], 'v_xor_b32': lambda: a[0] ^ a[1],
                     'v_lshlrev_b32': lambda: a[1] << (a[0] & U(31)), 'v_lshrrev_b32': lambda: a[1] >> (a[0] & U(31)),
                     'v_mul_lo_u32': lambda: a[0] * a[1], 'v_mul_u32_u24': lambda: a[0] * a[1], 'v_mad_u32_u24': lambda: a[0] * a[1] + a[2],
                     'v_mul_hi_u32': lambda: (a[0] * a[1]) >> U(32),
                     'v_lshl_add_u32': lambda: (a[0] << a[1]) + a[2], 'v_add_lshl_u32': lambda: (a[0] + a[1]) << a[2],
                     'v_lshl_or_b32': lambda: (a[0] << a[1]) | a[2], 'v_and_or_b32': lambda: (a[0] & a[1]) | a[2], 'v_or3_b32': lambda: a[0] | a[1] | a[2],
                     'v_add3_u32': lambda: a[0] + a[1] + a[2], 'v_bfe_u32': lambda: (a[0] >> a[1]) & ((U(1) << a[2]) - U(1)),
                     'v_xad_u32': lambda: (a[0] ^ a[1]) + a[2],
                     }.get(op)
        if f is not None: self.setv(o[0], f())
        else:
            for r in ins.wr:
                if r[0] == 'v': self.v[r[1]] = None
                elif r[0] == 'vcc': self.vcc = None
                elif r[0] == 's': self.s[r[1]] = None
    def gran(self, addr, nbytes):
        g = (addr[:, None] // 4 + np.arange(nbytes // 4)[None, :]).ravel()
        return np.unique(g)
    def ds(self, ins):
        op = ins.op; o = ins.ops
        ev = None
        if op.startswith('ds_read') or op.startswith('ds_write') or op.startswith('ds_add') or op.startswith('ds_or') or op.startswith('ds_max'):
            rd = op.startswith('ds_read')
            a = self.val(o[1] if rd else o[0])
            m = re.search(r'offset:(\S+)', ins.mods); off = int(m.group(1), 0) if m else 0
            if off > 65535: self.err('ds offset too large', ins)
            nb = {'b128': 16, 'b64': 8, 'b32': 4, 'u32': 4, 'b96': 12}[re.search(r'_(b128|b64|b32|u32|b96)', op).group(1)]
            if a is None: self.err('ds address unknown', ins)
            else:
                a = (a + np.uint64(off)).astype(np.int64)[self.lanes()]
                if a.size:
                    if (a + nb).max() > self.lds: self.err('ds out of LDS range', ins)
                    if (a % min(nb, 16 if nb == 16 else nb)).any(): self.err('ds misaligned', ins)
                    kind = 'R' if rd else ('W' if op.startswith('ds_write') else 'A')
                    ev = [kind, self.gran(a, nb), self.epoch, None, self.n, None, ins]
                    self.events.append(ev)
        for r in ins.wr: self.v[r[1]] = None
        self.lp.append((set(ins.wr), ev, ins.line))
    def vmem(self, ins):
        op = ins.op; o = ins.ops; ev = None
        if op.startswith('buffer_inv') or op.startswith('buffer_wbl2'):
            self.vp.append((set(), None, ins.line)); return
        dma = ins.is_dma()
        k = 0 if dma else 1
        voff = self.val(o[k]) if 'offen' in ins.mods else np.zeros(64, np.uint64)
        sr = int(re.match(r's\[(\d+)', o[k + 1]).group(1))
        soff = self.sval(o[k + 2])
        m = re.search(r'offset:(\S+)', ins.mods); off = int(m.group(1), 0) if m else 0
        if off > 4095: self.err('buffer offset too large', ins)
        nb = {'x4': 16, 'x2': 8, 'x3': 12}.get(op[-2:], 2 if 'short' in op else 4)
        lo, hi, nrec, w3 = (self.s.get(sr + i) for i in range(4))
        if w3 != 0x20000: self.err('srd word3', ins)
        if not isinstance(hi, tuple) or not isinstance(lo, int) or not isinstance(nrec, int): self.err('srd unknown', ins)
        else:
            if lo + nrec > self.bufsizes[hi[1]]: self.err(f'srd exceeds buffer {hi[1]}', ins)
            if voff is None or not isinstance(soff, int): self.err('vmem address unknown', ins)
            else:
                a = (voff + np.uint64(soff + off)).astype(np.int64)[self.lanes()]
                if a.size:
                    if (a + nb).max() > nrec and 'oobok' not in ins.text: self.err(f'vmem OOB: max {(a+nb).max()} > {nrec}', ins)
                    if (a % min(nb, 4)).any(): self.err('vmem misaligned', ins)
                    self.gl.append((hi[1], lo + a, nb, 'store' in op or 'atomic' in op, ins.line))
        if dma:
            if not isinstance(self.m0, int): self.err('m0 unknown', ins)
            else:
                a = (self.m0 & 0x3fffc) + off + np.arange(64) * nb
                if a.max() + nb > self.lds: self.err('dma out of LDS range', ins)
                ev = ['W', self.gran(a[self.lanes()], nb), self.epoch, None, self.n, None, ins]
                self.events.append(ev)
        for r in ins.wr: self.v[r[1]] = None
        self.vp.append((set(ins.wr), ev, ins.line))

def parse(text, kernel):
    prog = []; labels = {}
    for n, l in enumerate(text.split('\n'), 1):
        t = l.split(';')[0].strip()
        if t.startswith('.section'):
            continue
        if t.startswith('.amdhsa') or t.startswith('.end_amdhsa'): continue
        i = Ins(l); i.line = n;
        if i.kind == 'label': labels[i.label] = len(prog)
        prog.append(i)
    return prog, labels

def check(text, kernel, wgs, nwaves, bufsizes, lds, policy={}, verbose=True):
    prog, labels = parse(text, kernel)
    start = labels[kernel]
    allerrs = []; waves_all = []
    for wg in wgs:
        ws = []
        for w in range(nwaves):
            W = Wave(prog[start:], {k: v - start for k, v in labels.items()}, wg, w, bufsizes, lds, policy)
            W.run(); ws.append(W); allerrs += W.errs
        eps = {W.epoch for W in ws}
        if len(eps) != 1: allerrs.append(f'wg{wg}: barrier counts differ {[W.epoch for W in ws]}')
        ne = max(eps) + 1; G = lds // 4 + 1
        Wr = np.zeros((nwaves, ne, G), bool); Rd = np.zeros((nwaves, ne, G), bool); At = np.zeros((nwaves, ne, G), bool)
        for w, W in enumerate(ws):
            for ev in W.events:
                d = ev[3] if ev[3] is not None else ne - 1
                arr = {'W': Wr, 'R': Rd, 'A': At}[ev[0]]
                arr[w, ev[2]:d + 1][:, ev[1]] = True if False else True
                for e in range(ev[2], d + 1): arr[w, e, ev[1]] = True
            dmas = [e for e in W.events if e[0] == 'W' and e[6].kind == 'vmem']
            oth = [e for e in W.events if e[6].kind == 'ds']
            j0 = 0
            for e in dmas:
                m = np.zeros(G, bool); m[e[1]] = True
                for f in oth:
                    if f[5] is not None and f[5] < e[4]: continue
                    if f[4] > e[5]: break
                    if m[f[1]].any(): allerrs.append(f'wg{wg} w{w}: own-wave LDS race dma line {e[6].line} vs line {f[6].line}'); break
        for e in range(ne):
            nW = Wr[:, e].sum(0)
            for w in range(nwaves):
                others_w = nW - Wr[w, e]
                bad = (others_w > 0) & (Rd[w, e] | Wr[w, e] | At[w, e])
                if bad.any():
                    g = int(np.argmax(bad))
                    l1 = [ev[6].line for ev in ws[w].events if ev[2] <= e <= (ev[3] if ev[3] is not None else ne) and g in ev[1]]
                    allerrs.append(f'wg{wg} epoch {e}: LDS race wave {w} lines {l1} at byte {g*4}')
                    break
            nA = At[:, e].sum(0)
            for w in range(nwaves):
                bad = ((nA - At[w, e]) > 0) & Rd[w, e]
                if bad.any(): allerrs.append(f'wg{wg} epoch {e}: LDS atomic/read race wave {w} at byte {int(np.argmax(bad))*4}'); break
        waves_all.append(ws)
    if verbose:
        seen = set()
        for e in allerrs[:60]: print('  CHK', e)
        print(f'check {kernel}: wgs={list(wgs)} steps={[W.n for W in waves_all[0]]} epochs={waves_all[0][0].epoch} errors={len(allerrs)}')
    return allerrs, waves_all
```

```python
from asmlib import Emit, Ins
NAME = 'gated_mix__compressed_kv_cla__geglu_ffn__prompt'
X, CKV, WQ, WUK, WUV, WO, BX, WG_, WU_, WD_, GW, OUT, DBG, WS = range(14)
SIZES = {X: 2048*640*2, CKV: 2048*512*2, WQ: 640*4096*2, WUK: 512*4096*2, WUV: 512*4096*2, WO: 4096*640*2, BX: 2048*640*2,
         WG_: 640*1728*2, WU_: 640*1728*2, WD_: 1728*640*2, GW: 640*2, OUT: 2048*640*2, DBG: 256, WS: 268435456}
KF = 0
VF = 16 << 20
A3 = 32 << 20
A3P = 182 * 1024
GO = 56 << 20
PART = 60 << 20
WSUSE = 80 << 20

def vr(a, n=4): return f'v[{a}:{a+n-1}]' if n > 1 else f'v{a}'
def sr(a, n=4): return f's[{a}:{a+n-1}]'

def mfma(d, a, b, c=None):
    cs = vr(d) if c is None else (c if isinstance(c, str) else vr(c))
    return f'v_mfma_f32_16x16x32_bf16 {vr(d)}, {vr(a)}, {vr(b)}, {cs}'

def make_srd(e, s, ptr_s, nbytes, off=0):
    if off:
        e(f's_add_u32 s{s}, s{ptr_s}, {off}'); e(f's_addc_u32 s{s+1}, s{ptr_s+1}, 0')
    else:
        e(f's_mov_b32 s{s}, s{ptr_s}'); e(f's_mov_b32 s{s+1}, s{ptr_s+1}')
    e(f's_mov_b32 s{s+2}, {nbytes}'); e(f's_mov_b32 s{s+3}, 0x20000')

class LdsBase:
    def __init__(self, regs, cur=0): self.regs = regs; self.cur = cur
    def ensure(self, e, lo, hi):
        if lo >= self.cur and hi - self.cur <= 65535: return []
        d = lo - self.cur
        self.cur = lo
        return [f'v_add_u32 v{r}, {d & 0xffffffff:#x}, v{r}' for r in self.regs]
    def off(self, addr):
        o = addr - self.cur
        assert 0 <= o <= 65535, (addr, self.cur)
        return o

def kernel_header(name):
    return f'.text\n.globl {name}\n.p2align 8\n.type {name},@function\n{name}:\n'
def kernel_desc(name, vgpr=256, sgpr=102):
    return f'''.section .rodata,"a"
.p2align 6
.amdhsa_kernel {name}
  .amdhsa_next_free_vgpr {vgpr}
  .amdhsa_next_free_sgpr {sgpr}
  .amdhsa_accum_offset {(vgpr+3)//4*4}
  .amdhsa_group_segment_fixed_size 0
  .amdhsa_kernarg_size 112
  .amdhsa_user_sgpr_count 2
  .amdhsa_user_sgpr_kernarg_segment_ptr 1
  .amdhsa_system_sgpr_workgroup_id_x 1
  .amdhsa_float_denorm_mode_32 3
.end_amdhsa_kernel
'''
```

```python
from gen_common import *

ST = 'sc1'

def gen_p1(opts={}):
    st = opts.get('st', ST)
    e = Emit()
    ACC = 128; WSET = 96; RING = 80; VKA = 64; VKW = 68; VGA = 72; VGW = 76
    BKA = 56; BKW = 58; BGA = 52; BGW = 54; VL16 = 48
    S_ACT = 4; S_W = 8; S_O = 12; S_X = 16; S_GU = 20
    sW = 24; sXCD = 25; sJ = 26; sTT = 27; sCT = 28; sKIND = 29
    sOA = 30; sOW = 31
    sGA = 32; sGW = 33
    sOUT = 34; sHOUT = 35; sT = 36; sT2 = 37; sM0A = 38; sM0W = 39; sM0G = 40
    P = 44
    e('s_cmp_ge_u32 s2, 256'); e('s_cbranch_scc1 P1_END')
    e(f's_load_dwordx4 s[{P}:{P+3}], s[0:1], 0')
    e(f's_load_dwordx4 s[{P+4}:{P+7}], s[0:1], 24')
    e(f's_load_dwordx4 s[{P+8}:{P+11}], s[0:1], 56')
    e(f's_load_dwordx2 s[{P+12}:{P+13}], s[0:1], 80')
    e(f's_load_dwordx2 s[{P+14}:{P+15}], s[0:1], 104')
    e('v_lshrrev_b32 v1, 6, v0'); e('v_and_b32 v2, 63, v0')
    e(f'v_readfirstlane_b32 s{sW}, v1')
    e(f's_and_b32 s{sXCD}, s2, 7'); e(f's_lshr_b32 s{sJ}, s2, 3')
    e(f's_and_b32 s{sTT}, s{sJ}, 7'); e(f's_lshr_b32 s{sT}, s{sJ}, 3')
    e(f's_lshr_b32 s{sKIND}, s{sT}, 1'); e(f's_and_b32 s{sT}, s{sT}, 1')
    e(f's_lshl_b32 s{sCT}, s{sXCD}, 1'); e(f's_add_u32 s{sCT}, s{sCT}, s{sT}')
    e('v_lshrrev_b32 v3, 3, v2'); e('v_and_b32 v4, 7, v2'); e('v_lshrrev_b32 v5, 4, v2')
    e('v_xor_b32 v6, v4, v5'); e('v_lshlrev_b32 v6, 4, v6')
    e(f's_lshl_b32 s{sT}, s{sW}, 5'); e(f'v_add_u32 v7, s{sT}, v3')
    e(f'v_lshl_add_u32 v{VKA}, v7, 10, v6')
    e(f'v_xor_b32 v8, 64, v{VKA}')
    e(f'v_add_u32 v{VKA+1}, {7168}, v8'); e(f'v_add_u32 v{VKA+2}, {2*7168}, v{VKA}'); e(f'v_add_u32 v{VKA+3}, {3*7168}, v8')
    e('v_and_b32 v9, 1, v5'); e('v_lshlrev_b32 v9, 1, v9'); e('v_xor_b32 v9, v9, v4'); e('v_lshlrev_b32 v9, 4, v9')
    e(f's_and_b32 s{sT}, s{sW}, 1'); e(f's_lshl_b32 s{sT}, s{sT}, 5'); e(f'v_add_u32 v10, s{sT}, v3')
    e(f's_lshr_b32 s{sT}, s{sW}, 1'); e(f's_lshl_b32 s{sT}, s{sT}, 7')
    e(f'v_lshl_add_u32 v{VKW}, v10, 13, v9'); e(f'v_add_u32 v{VKW}, s{sT}, v{VKW}')
    e(f'v_xor_b32 v8, 64, v{VKW}')
    e(f'v_add_u32 v{VKW+1}, {65536-1024}, v8'); e(f'v_add_u32 v{VKW+2}, {2*(65536-1024)}, v{VKW}'); e(f'v_add_u32 v{VKW+3}, {3*(65536-1024)}, v8')
    e(f's_lshl_b32 s{sOA}, s{sTT}, 18'); e(f's_lshl_b32 s{sOW}, s{sCT}, 9')
    e(f's_lshl_b32 s{sM0A}, s{sW}, 12'); e(f's_lshl_b32 s{sM0G}, s{sW}, 11')
    e('s_waitcnt lgkmcnt(0)')
    make_srd(e, S_ACT, P+2, SIZES[CKV])
    e(f's_cmp_eq_u32 s{sKIND}, 0')
    e(f's_cselect_b32 s{S_W}, s{P+4}, s{P+6}'); e(f's_cselect_b32 s{S_W+1}, s{P+5}, s{P+7}')
    e(f's_mov_b32 s{S_W+2}, {SIZES[WUK]}'); e(f's_mov_b32 s{S_W+3}, 0x20000')

    kvbuf = [(0, 32768), (65536, 98304)]
    gubuf = [(0, 32768), (131072, 49152), (65536, 98304)]
    def kv_dma(s):
        ab, wb = kvbuf[s & 1]
        L = [[f's_add_u32 m0, s{sM0A}, {ab}', None]]
        for i in range(4): L.append([f'buffer_load_dwordx4 v{VKA+i}, {sr(S_ACT)}, s{sOA} offen offset:{1024*i} lds', ('kv', s)])
        L.append([f's_add_u32 m0, s{sM0A}, {wb}', None])
        L.append([f's_add_u32 s{sOA}, s{sOA}, 128', None])
        for i in range(4): L.append([f'buffer_load_dwordx4 v{VKW+i}, {sr(S_W)}, s{sOW} offen offset:{1024*i} lds', ('kv', s)])
        L.append([f's_add_u32 s{sOW}, s{sOW}, {64*8192}', None])
        return L
    def gu_dma(s):
        ab, wb = gubuf[s % 3]
        L = [[f's_add_u32 m0, s{sM0A}, {ab}', None]]
        for i in range(4): L.append([f'buffer_load_dwordx4 v{VGA+i}, {sr(S_X)}, s{sGA} offen offset:{1024*i} lds', ('gu', s)])
        L.append([f's_add_u32 m0, s{sM0G}, {wb}', None])
        L.append([f's_add_u32 s{sGA}, s{sGA}, 128', None])
        for i in range(2): L.append([f'buffer_load_dwordx4 v{VGW+i}, {sr(S_GU)}, s{sGW} offen offset:{1024*i} lds', ('gu', s)])
        L.append([f's_add_u32 s{sGW}, s{sGW}, {64*3456}', None])
        return L
    for s in (0, 1):
        for t, tag in kv_dma(s): e(t, tag)
    make_srd(e, S_O, P+14, WSUSE)
    make_srd(e, S_X, P, SIZES[X])
    e(f's_cmp_lt_u32 s{sW}, 4')
    e(f's_cselect_b32 s{S_GU}, s{P+8}, s{P+10}'); e(f's_cselect_b32 s{S_GU+1}, s{P+9}, s{P+11}')
    e(f's_mov_b32 s{S_GU+2}, {SIZES[WG_]}'); e(f's_mov_b32 s{S_GU+3}, 0x20000')
    e(f's_mul_i32 s{sT}, s{sXCD}, 27'); e(f's_add_u32 s{sT}, s{sT}, s{sJ}')
    e(f's_and_b32 s{sT2}, s{sT}, 7'); e(f's_lshr_b32 s{sT}, s{sT}, 3')
    e(f's_mul_i32 s{sGA}, s{sT2}, {256*1280}'); e(f's_lshl_b32 s{sGW}, s{sT}, 7')
    e(f's_lshl_b32 s{sT2}, s{sT2}, 4'); e(f's_and_b32 s{sHOUT}, s{sW}, 3'); e(f's_lshl_b32 s{sHOUT}, s{sHOUT}, 2'); e(f's_add_u32 s{sT2}, s{sT2}, s{sHOUT}')
    e(f's_mul_i32 s{sT2}, s{sT2}, 182'); e(f's_lshl_b32 s{sT}, s{sT}, 1'); e(f's_add_u32 s{sT2}, s{sT2}, s{sT}')
    e(f's_lshr_b32 s{sT}, s{sW}, 2'); e(f's_add_u32 s{sT2}, s{sT2}, s{sT}'); e(f's_add_u32 s{sT2}, s{sT2}, 128')
    e(f's_lshl_b32 s{sHOUT}, s{sT2}, 10'); e(f's_add_u32 s{sHOUT}, s{sHOUT}, {A3}')
    e(f's_movk_i32 s{sT}, 1280'); e(f'v_mul_lo_u32 v11, v7, s{sT}'); e(f'v_add_u32 v{VGA}, v11, v6')
    e(f'v_xor_b32 v8, 64, v6'); e('v_add_u32 v8, v11, v8')
    e(f'v_add_u32 v{VGA+1}, {8*1280-1024}, v8'); e(f'v_add_u32 v{VGA+2}, {2*(8*1280-1024)}, v{VGA}'); e(f'v_add_u32 v{VGA+3}, {3*(8*1280-1024)}, v8')
    e(f's_and_b32 s{sT}, s{sW}, 3'); e(f's_lshl_b32 s{sT}, s{sT}, 4'); e(f'v_add_u32 v10, s{sT}, v3')
    e(f's_movk_i32 s{sT}, 3456'); e(f'v_mul_lo_u32 v11, v10, s{sT}'); e(f'v_add_u32 v{VGW}, v11, v9')
    e(f'v_xor_b32 v8, 64, v9'); e('v_add_u32 v8, v11, v8'); e(f'v_add_u32 v{VGW+1}, {8*3456-1024}, v8')
    e('v_and_b32 v12, 15, v2'); e('v_lshrrev_b32 v13, 1, v12'); e('v_xor_b32 v13, v13, v5'); e('v_lshlrev_b32 v13, 4, v13')
    e('v_lshl_add_u32 v13, v12, 7, v13')
    e(f's_and_b32 s{sT}, s{sW}, 1'); e(f's_lshl_b32 s{sT}, s{sT}, 14'); e(f'v_add_u32 v{BKA}, s{sT}, v13'); e(f'v_xor_b32 v{BKA+1}, 64, v{BKA}')
    e(f's_and_b32 s{sT}, s{sW}, 3'); e(f's_lshl_b32 s{sT}, s{sT}, 13'); e(f'v_add_u32 v{BGA}, s{sT}, v13'); e(f'v_xor_b32 v{BGA+1}, 64, v{BGA}')
    e('v_bfe_u32 v14, v2, 2, 2'); e('v_lshl_add_u32 v15, v5, 3, v14'); e('v_lshlrev_b32 v15, 7, v15')
    e('v_lshrrev_b32 v14, 1, v14'); e('v_and_b32 v16, 1, v5'); e('v_lshl_or_b32 v14, v16, 1, v14'); e('v_lshlrev_b32 v14, 5, v14')
    e('v_and_b32 v16, 3, v2'); e('v_lshlrev_b32 v16, 3, v16'); e('v_add3_u32 v15, v15, v14, v16')
    e(f's_lshr_b32 s{sT}, s{sW}, 1'); e(f's_lshl_b32 s{sT}, s{sT}, 13'); e(f'v_add_u32 v{BKW}, s{sT}, v15')
    for nb in range(1, 4): e(f'v_xor_b32 v{BKW+nb}, {nb*32}, v{BKW}')
    e(f's_lshr_b32 s{sT}, s{sW}, 2'); e(f's_lshl_b32 s{sT}, s{sT}, 6'); e(f'v_xor_b32 v{BGW}, s{sT}, v15'); e(f'v_xor_b32 v{BGW+1}, 32, v{BGW}')
    e(f'v_lshlrev_b32 v{VL16}, 4, v2')
    e(f's_lshr_b32 s{sT}, s{sW}, 2'); e(f's_lshl_b32 s{sT2}, s{sCT}, 1'); e(f's_add_u32 s{sT}, s{sT}, s{sT2}'); e(f's_lshl_b32 s{sOUT}, s{sT}, 19')
    e(f's_lshl_b32 s{sT}, s{sTT}, 16'); e(f's_add_u32 s{sOUT}, s{sOUT}, s{sT}')
    e(f's_and_b32 s{sT}, s{sW}, 1'); e(f's_lshl_b32 s{sT}, s{sT}, 15'); e(f's_add_u32 s{sOUT}, s{sOUT}, s{sT}')
    e(f's_bfe_u32 s{sT}, s{sW}, 0x10001')
    e(f's_cmp_eq_u32 s{sKIND}, 0'); e(f's_cselect_b32 s{sT2}, 11, 12'); e(f's_lshl_b32 s{sT}, s{sT}, s{sT2}'); e(f's_add_u32 s{sOUT}, s{sOUT}, s{sT}')
    e(f's_lshl_b32 s{sT}, s{sKIND}, 24'); e(f's_add_u32 s{sOUT}, s{sOUT}, s{sT}')
    e(f's_cmp_eq_u32 s{sKIND}, 0'); e('s_cbranch_scc0 P1_V')

    saved = (list(e.lpend), list(e.vpend))
    def accb(tb, nb): return ACC + (tb * 4 + nb) * 4

    def body(kind):
        e.lpend, e.vpend = list(saved[0]), list(saved[1])
        bka = LdsBase([BKA, BKA+1]); bkw = LdsBase([BKW+i for i in range(4)])
        bga = LdsBase([BGA, BGA+1]); bgw = LdsBase([BGW, BGW+1])
        ring = [0]
        def kv_act(s, g):
            ks, tb = divmod(g, 8); ab = kvbuf[s & 1][0]
            r = RING + 4 * (g % 4)
            return f'ds_read_b128 {vr(r)}, v{BKA+ks} offset:{bka.off(ab + tb*2048)}'
        def kv_w(s, ks, nb, u):
            wb = kvbuf[s & 1][1]; r = WSET + 16 * ks + 4 * nb + 2 * u
            return f'ds_read_b64_tr_b16 {vr(r,2)}, v{BKW+nb} offset:{bkw.off(wb + ks*4096 + u*512)}'
        def gu_act(s, g):
            ks, tb = divmod(g, 4); ab = gubuf[s % 3][0]
            r = RING + 4 * (g % 4)
            return f'ds_read_b128 {vr(r)}, v{BGA+ks} offset:{bga.off(ab + tb*2048)}'
        def gu_w(s, ks, nb, u):
            wb = gubuf[s % 3][1]; r = WSET + 16 * ks + 4 * nb + 2 * u
            return f'ds_read_b64_tr_b16 {vr(r,2)}, v{BGW+(nb&1)} offset:{bgw.off(wb + (nb>>1)*8192 + ks*4096 + u*512)}'
        def kv_first(s):
            ab, wb = kvbuf[s & 1]
            L = bka.ensure(e, ab, ab + 7*2048) + bkw.ensure(e, wb, wb + 4608)
            L += [lambda: kv_act(s, 0)] + [(lambda nb=nb, u=u: kv_w(s, 0, nb, u)) for nb in range(4) for u in range(2)] + [lambda: kv_act(s, 1)]
            return L
        def gu_first(s):
            ab, wb = gubuf[s % 3]
            L = bga.ensure(e, ab, ab + 3*2048) + bgw.ensure(e, wb, wb + 8192 + 4608)
            L += [lambda: gu_act(s, 0)] + [(lambda nb=nb, u=u: gu_w(s, 0, nb, u)) for nb in range(4) for u in range(2)] + [lambda: gu_act(s, 1)]
            return L
        def put(x, tag=None):
            e(x() if callable(x) else x, tag)

        quads = []
        if kind == 0:
            for tb in range(8):
                for j in range(2): quads.append((accb(tb, 2*j), accb(tb, 2*j+1), tb*4096 + j*1024))
        else:
            for jj in range(4):
                for nb in range(4): quads.append((accb(2*jj, nb), accb(2*jj+1, nb), jj*8192 + nb*1024))
        def cvts(q):
            a, b, _ = q
            return [f'v_cvt_pk_bf16_f32 v{a}, v{a}, v{a+1}', f'v_cvt_pk_bf16_f32 v{a+1}, v{a+2}, v{a+3}',
                    f'v_cvt_pk_bf16_f32 v{a+2}, v{b}, v{b+1}', f'v_cvt_pk_bf16_f32 v{a+3}, v{b+2}, v{b+3}']
        def store(q):
            a, _, off = q
            hi, lo = off & ~4095, off & 4095
            return [[f's_add_u32 s{sT}, s{sOUT}, {hi}', None], [f'buffer_store_dwordx4 {vr(a)}, v{VL16}, {sr(S_O)}, s{sT} offen offset:{lo} {st}', ('st',)]]

        def kv_stage(s, nxt_first, nxt_tag, dma):
            dma = list(dma); post = []
            for g in range(16):
                ks, tb = divmod(g, 8)
                if g == 14 and nxt_first is not None:
                    e.wait_tag(lambda t: t == nxt_tag, lgkm=0)
                    e('s_barrier')
                    post = nxt_first()
                for nb in range(4):
                    a = RING + 4 * (g % 4); w = WSET + 16 * ks + 4 * nb; d = accb(tb, nb)
                    c = '0' if (s == 0 and ks == 0) else None
                    e(mfma(d, w, a, c) if kind == 0 else mfma(d, a, w, c))
                    if g < 14:
                        if nb == 0 and g + 2 < 16: put(kv_act(s, g + 2))
                        if 2 <= g < 6 and nb in (1, 3): put(kv_w(s, 1, g - 2, nb >> 1))
                        if dma and nb in (1, 2, 3) and (g < 2 or nb == 2):
                            t, tag = dma.pop(0); put(t, tag)
                            while dma and dma[0][1] is None and tag is not None:
                                t, tag2 = dma.pop(0); put(t, tag2); break
                    else:
                        for _ in range(2):
                            if post: put(post.pop(0))
            assert not dma and not post, (dma, post)

        guacc = [q[1] for q in quads]
        def gu_stage(s, dma, stores, last):
            dma = list(dma) ; stores = list(stores); post = []
            for g in range(8):
                ks, tb = divmod(g, 4)
                if g == 6 and not last:
                    e.wait_tag(lambda t: t == ('gu', s + 1), lgkm=0)
                    e('s_barrier')
                    post = gu_first(s + 1)
                for nb in range(4):
                    a = RING + 4 * (g % 4); w = WSET + 16 * ks + 4 * nb; d = guacc[tb * 4 + nb]
                    if s == 0 and ks == 0:
                        for t in cvts(quads[tb * 4 + nb]): e(t)
                    e(mfma(d, w, a, '0' if (s == 0 and ks == 0) else None))
                    if g < 6:
                        if nb == 0: put(gu_act(s, g + 2))
                        if g < 4 and nb in (1, 3): put(gu_w(s, 1, g, nb >> 1))
                        if nb == 2 or (g >= 4 and nb > 0):
                            src = dma if dma else stores
                            if src and not (s == 0 and ks == 0 and src is stores):
                                t, tag = src.pop(0); put(t, tag)
                                if tag is None and src: t, tag = src.pop(0); put(t, tag)
                                if src is dma and dma and dma[0][1] is None and len(dma) == 1: t, tag = dma.pop(0); put(t, tag)
                    else:
                        for _ in range(2):
                            if post: put(post.pop(0))
            assert not dma and not post and not stores, (s, dma, post, stores)

        e.wait_tag(lambda t: t == ('kv', 0)); e('s_barrier')
        for x in kv_first(0): put(x)
        for s in range(7):
            kv_stage(s, (lambda s=s: kv_first(s + 1)), ('kv', s + 1), kv_dma(s + 1) if s >= 1 else [])
        if kind == 1:
            e(f's_cmp_ge_u32 s{sJ}, 27'); e('s_cbranch_scc1 P1_NOGU')
            keep = (list(e.lpend), list(e.vpend), bka.cur, bkw.cur)
        kv_stage(7, lambda: gu_first(0), ('gu', 0), gu_dma(0) + gu_dma(1))
        sq = list(quads)
        for s in range(10):
            stl = []
            if s >= 1:
                for _ in range(2):
                    if sq: stl += store(sq.pop(0))
            gu_stage(s, gu_dma(s + 2) if s + 2 < 10 and s >= 0 else [], stl, s == 9)
        assert not sq
        c0 = -2.0 * 0.7978845608028654 * 1.4426950408889634
        import struct
        f2u = lambda x: struct.unpack('<I', struct.pack('<f', x))[0]
        e(f's_mov_b32 s{sT2}, {f2u(c0 * 0.044715):#x}'); e(f'v_mov_b32 v4, {f2u(c0):#x}')
        for tb in range(4):
            T = 8 + (tb & 1) * 16
            for j in range(2):
                gb = guacc[tb*4 + j]; ub = guacc[tb*4 + 2 + j]; t = T + 4 * j
                for r in range(4): e(f'v_mul_f32 v{t+r}, v{gb+r}, v{gb+r}')
                for r in range(4): e(f'v_fma_f32 v{t+r}, v{t+r}, s{sT2}, v4')
                for r in range(4): e(f'v_mul_f32 v{t+r}, v{t+r}, v{gb+r}')
                for r in range(4): e(f'v_exp_f32 v{t+r}, v{t+r}')
                for r in range(4): e(f'v_mul_f32 v{gb+r}, v{gb+r}, v{ub+r}')
                for r in range(4): e(f'v_add_f32 v{t+r}, 1.0, v{t+r}')
                for r in range(4): e(f'v_rcp_f32 v{t+r}, v{t+r}')
                for r in range(4): e(f'v_mul_f32 v{t+r}, v{t+r}, v{gb+r}')
            e(f'v_cvt_pk_bf16_f32 v{T+8}, v{T}, v{T+1}'); e(f'v_cvt_pk_bf16_f32 v{T+9}, v{T+2}, v{T+3}')
            e(f'v_cvt_pk_bf16_f32 v{T+10}, v{T+4}, v{T+5}'); e(f'v_cvt_pk_bf16_f32 v{T+11}, v{T+6}, v{T+7}')
            e(f's_add_u32 s{sT}, s{sHOUT}, {tb*A3P}')
            e(f'buffer_store_dwordx4 {vr(T+8)}, v{VL16}, {sr(S_O)}, s{sT} offen {st}', ('st',))
        e('s_endpgm')
        if kind == 1:
            e('P1_NOGU:')
            e.lpend, e.vpend = list(keep[0]), list(keep[1]); bka.cur, bkw.cur = keep[2], keep[3]
            kv_stage(7, None, None, [])
            for q in quads:
                for t in cvts(q): e(t)
                for t, tag in store(q): e(t, tag)
            gen_gate(e)

    def gen_gate(e):
        e(f's_mul_i32 s{sT}, s{sXCD}, 5'); e(f's_add_u32 s{sT}, s{sT}, s{sJ}'); e(f's_sub_u32 s{sT}, s{sT}, 27')
        e(f's_cmp_ge_u32 s{sT}, 32'); e('s_cbranch_scc1 P1_END')
        make_srd(e, S_ACT, P+12, SIZES[GW])
        e(f's_lshl_b32 s{sT}, s{sT}, 6'); e(f's_lshl_b32 s{sT2}, s{sW}, 3'); e(f's_add_u32 s{sT}, s{sT}, s{sT2}')
        e('v_and_b32 v2, 63, v0'); e('v_lshrrev_b32 v3, 3, v2'); e('v_and_b32 v4, 7, v2')
        e(f'v_add_u32 v3, s{sT}, v3')
        e(f's_movk_i32 s{sT2}, 1280'); e(f'v_mul_lo_u32 v5, v3, s{sT2}'); e('v_lshlrev_b32 v6, 4, v4'); e('v_add_u32 v5, v5, v6')
        for i in range(10):
            e(f'buffer_load_dwordx4 {vr(8+8*i)}, v5, {sr(S_X)}, 0 offen offset:{128*i}')
            e(f'buffer_load_dwordx4 {vr(12+8*i)}, v6, {sr(S_ACT)}, 0 offen offset:{128*i}')
        e('v_mov_b32 v100, 0'); e('v_mov_b32 v101, 0'); e(f's_mov_b32 s{sT2}, 0xffff0000')
        for i in range(10):
            for d in range(4):
                x = 8 + 8*i + d; g = x + 4
                e(f'v_lshlrev_b32 v102, 16, v{x}'); e(f'v_lshlrev_b32 v103, 16, v{g}')
                e(f'v_and_b32 v{x}, s{sT2}, v{x}'); e(f'v_and_b32 v{g}, s{sT2}, v{g}')
                e('v_mul_f32 v102, v102, v103'); e(f'v_mul_f32 v103, v{x}, v{g}')
                e('v_cvt_pk_bf16_f32 v102, v102, v103')
                e('v_lshlrev_b32 v103, 16, v102'); e(f'v_and_b32 v102, s{sT2}, v102')
                e('v_add_f32 v100, v100, v103'); e('v_add_f32 v101, v101, v102')
        e('v_add_f32 v100, v100, v101')
        e('v_add_f32_dpp v100, v100, v100 quad_perm:[1,0,3,2] row_mask:0xf bank_mask:0xf')
        e('v_add_f32_dpp v100, v100, v100 quad_perm:[2,3,0,1] row_mask:0xf bank_mask:0xf')
        e('v_add_f32_dpp v100, v100, v100 row_half_mirror row_mask:0xf bank_mask:0xf')
        e('v_cvt_pk_bf16_f32 v100, v100, v100'); e('v_lshlrev_b32 v100, 16, v100')
        e('v_mul_f32 v100, 0xbfb8aa3b, v100'); e('v_exp_f32 v100, v100'); e('v_add_f32 v100, 1.0, v100'); e('v_rcp_f32 v100, v100')
        e('v_cvt_pk_bf16_f32 v100, v100, v100'); e('v_lshlrev_b32 v100, 16, v100')
        e('v_sub_f32 v101, 1.0, v100'); e('v_cvt_pk_bf16_f32 v101, v101, v101'); e('v_lshlrev_b32 v101, 16, v101')
        e('v_lshlrev_b32 v3, 3, v3'); e(f's_mov_b32 s{sT}, {GO}')
        e('v_cmp_eq_u32 vcc, 0, v4'); e('s_and_saveexec_b64 s[64:65], vcc')
        e(f'buffer_store_dwordx2 v[100:101], v3, {sr(S_O)}, s{sT} offen {st}')
        e('s_endpgm')

    body(0)
    e('P1_V:')
    body(1)
    e('P1_END:'); e('s_endpgm')
    return e

if __name__ == '__main__':
    import chk
    e = gen_p1()
    txt = kernel_header('p1_kernel') + e.text()
    open('p1.s', 'w').write(txt)
    print(len(e.out), 'lines')
    chk.check(txt, 'p1_kernel', [0, 9, 17*8+3, 255, 27*8+1, 256], 8, SIZES, 163840)
```

```python
import sys, json
from gen_common import *
import gen_p1
def build(opts={}):
    ks = []
    ks.append(('p1_kernel', gen_p1.gen_p1(opts), 163840))
    try:
        import gen_p2
        if not opts.get('no_p2'): ks.append(('p2_kernel', gen_p2.gen_p2(opts), 163840))
    except ImportError: pass
    try:
        import gen_p3
        if not opts.get('no_p3'): ks.append(('p3_kernel', gen_p3.gen_p3(opts), 163840))
    except ImportError: pass
    ref = open(f'cdna_kernels/{NAME}.s.ref').read().split('\n')
    head = [l for l in ref[:15] if l.startswith(';') and '@launch' not in l]
    s = '\n'.join(head) + '\n'
    for n, e, lds in ks: s += f'; @launch kernel={n} grid=(256,1,1) block=(512,1,1) lds={lds}\n'
    s += '.amdgcn_target "amdgcn-amd-amdhsa--gfx950"\n'
    for n, e, lds in ks: s += kernel_header(n) + e.text()
    for n, e, lds in ks: s += kernel_desc(n)
    return s
if __name__ == '__main__':
    opts = json.loads(sys.argv[2]) if len(sys.argv) > 2 else {}
    out = sys.argv[1] if len(sys.argv) > 1 else f'cdna_kernels/{NAME}.s'
    s = build(opts)
    open(out, 'w').write(s)
    print(out, len(s), 'bytes', s.count('\n'), 'lines')
```
